```python
import torch

def _softmax(x, axis=-1):
    return torch.softmax(x, dim=axis)
def _gelu(x):
    return torch.nn.functional.gelu(x, approximate="tanh")
def _silu(x):
    return torch.nn.functional.silu(x)
def _sigmoid(x):
    return torch.sigmoid(x)
def _layernorm(x, axis=-1, eps=1e-5):
    m = x.mean(dim=axis, keepdim=True)
    v = x.var(dim=axis, keepdim=True, unbiased=False)
    return (x - m) / torch.sqrt(v + eps)
def _scatter_add(tgt, idx, src, axis=0):
    return tgt.clone().index_add_(axis, idx, src)
def _segment_sum(src, seg, n):
    out = torch.zeros((n,) + src.shape[1:], dtype=src.dtype)
    return out.index_add_(0, seg, src)
def _pad(x, pw):
    flat = tuple(v for pair in reversed(pw) for v in pair)
    return torch.nn.functional.pad(x, flat)

kernel_name = 'concat_heads__gqa_block_cached__mha_block_cached__near_ridge'

def setup_inputs():

    _w = (lambda a: (lambda t: t.to(torch.bfloat16) if t.is_floating_point() else t)(torch.as_tensor(a)))
    def _A_setup():
        B, Sq, D = 16, 96, 448
        Hq, Hkv, Sk, Dh = 16, 8, 1024, 256
        assert Hq % Hkv == 0, (Hq, Hkv)
        return {
            "x": _w((lambda *s: torch.randn(*s, dtype=torch.bfloat16) * 0.8)(B, Sq, D)),
            "k_cache": _w((lambda *s: torch.randn(*s, dtype=torch.bfloat16) * 0.8)(B, Hkv, Sk, Dh)),
            "v_cache": _w((lambda *s: torch.randn(*s, dtype=torch.bfloat16) * 0.05)(B, Hkv, Sk, Dh)),
            "wq": _w((lambda *s: torch.randn(*s, dtype=torch.bfloat16) * 0.8)(D, Hq * Dh) * (D ** -0.5)),
            "wo": _w((lambda *s: torch.randn(*s, dtype=torch.bfloat16) * 0.05)(Hq * Dh, D) * ((Hq * Dh) ** -0.5)),
        }
    _A_in = _A_setup()

    def _B_setup():
        B, Sq, D = 16, 96, 448
        H, Sk, Dh = 16, 1024, 256
        return {
            "x": _w((lambda *s: torch.randn(*s, dtype=torch.bfloat16) * 0.8)(B, Sq, D)),
            "k_cache": _w((lambda *s: torch.randn(*s, dtype=torch.bfloat16) * 0.8)(B, H, Sk, Dh)),
            "v_cache": _w((lambda *s: torch.randn(*s, dtype=torch.bfloat16) * 0.05)(B, H, Sk, Dh)),
            "wq": _w((lambda *s: torch.randn(*s, dtype=torch.bfloat16) * 0.8)(D, H * Dh) * (D ** -0.5)),
            "wo": _w((lambda *s: torch.randn(*s, dtype=torch.bfloat16) * 0.05)(H * Dh, D) * ((H * Dh) ** -0.5)),
        }
    _B_in = _B_setup()

    return {
        "A_x": _A_in["x"],
        "A_k_cache": _A_in["k_cache"],
        "A_v_cache": _A_in["v_cache"],
        "A_wq": _A_in["wq"],
        "A_wo": _A_in["wo"],
        "B_x": _B_in["x"],
        "B_k_cache": _B_in["k_cache"],
        "B_v_cache": _B_in["v_cache"],
        "B_wq": _B_in["wq"],
        "B_wo": _B_in["wo"],
    }

def reference(A_x, A_k_cache, A_v_cache, A_wq, A_wo, B_x, B_k_cache, B_v_cache, B_wq, B_wo):
    def _A_ref(x, k_cache, v_cache, wq, wo):
        B, Sq, D = x.shape
        Hq, Dh = 16, 256
        Hkv = k_cache.shape[1]
        rep = Hq // Hkv
        q = (lambda x, *d: x.permute(*d))((x @ wq).reshape(B, Sq, Hq, Dh), 0, 2, 1, 3)
        k = (lambda x, n, axis: torch.repeat_interleave(x, n, dim=axis))(k_cache, rep, axis=1)
        v = (lambda x, n, axis: torch.repeat_interleave(x, n, dim=axis))(v_cache, rep, axis=1)
        scores = torch.einsum("bhqd,bhkd->bhqk", q, k) * (Dh ** -0.5)
        p = _softmax(scores, axis=-1)
        o = torch.einsum("bhqk,bhkd->bhqd", p, v)
        return (lambda x, *d: x.permute(*d))(o, 0, 2, 1, 3).reshape(B, Sq, Hq * Dh) @ wo

    def _B_ref(x, k_cache, v_cache, wq, wo):
        B, Sq, D = x.shape
        H, Dh = 16, 256
        q = (lambda x, *d: x.permute(*d))((x @ wq).reshape(B, Sq, H, Dh), 0, 2, 1, 3)
        scores = torch.einsum("bhqd,bhkd->bhqk", q, k_cache) * (Dh ** -0.5)
        p = _softmax(scores, axis=-1)
        o = torch.einsum("bhqk,bhkd->bhqd", p, v_cache)
        return (lambda x, *d: x.permute(*d))(o, 0, 2, 1, 3).reshape(B, Sq, H * Dh) @ wo

    a = _A_ref(A_x, A_k_cache, A_v_cache, A_wq, A_wo)
    b = _B_ref(B_x, B_k_cache, B_v_cache, B_wq, B_wo)
    return torch.concatenate([a, b], axis=-1)
```

```python
import re

TRANS = ("v_exp_f32", "v_rcp_f32", "v_log_f32", "v_rsq_f32", "v_sqrt_f32")


def regs_of(op):
    op = op.strip()
    m = re.fullmatch(r"-?\|?([vas])\[(\d+):(\d+)\]\|?", op)
    if m:
        return [f"{m.group(1)}{i}" for i in range(int(m.group(2)), int(m.group(3)) + 1)]
    m = re.fullmatch(r"-?\|?([vas])(\d+)\|?", op)
    if m:
        return [f"{m.group(1)}{m.group(2)}"]
    if op in ("vcc", "m0", "exec"):
        return [op]
    if op in ("vcc_lo", "vcc_hi"):
        return ["vcc"]
    return []


class I:
    def __init__(self, text, tag=None, need=None, kind=None):
        self.text = text
        self.tag = tag
        self.need = need
        self.kind = kind
        self.rd = set()
        self.wr = set()
        self.mA = self.mB = self.mC = self.mD = ()
        self.n = None
        if kind is None:
            self.parse()

    def parse(self):
        t = self.text.split(";")[0].strip()
        if t.endswith(":"):
            self.kind = "label"
            return
        parts = t.split(None, 1)
        mn = parts[0]
        self.mn = mn
        ops = []
        if len(parts) > 1:
            rest = parts[1]
            ops = [o.strip() for o in rest.split(",")]
            fixed = []
            for o in ops:
                fixed.append(o.split()[0] if o else o)
            self.mods = rest
            ops = fixed
        else:
            self.mods = ""
        R = lambda k: regs_of(ops[k]) if k < len(ops) else []
        if mn.startswith("v_mfma"):
            self.kind = "mfma"
            self.mD, self.mA, self.mB, self.mC = R(0), R(1), R(2), R(3)
            self.wr = set(self.mD)
            self.rd = set(self.mA) | set(self.mB) | set(self.mC)
        elif mn.startswith("ds_read"):
            self.kind = "ds"
            self.wr = set(R(0)); self.rd = set(R(1))
        elif mn.startswith("ds_write"):
            self.kind = "ds"
            self.rd = set(R(0)) | set(R(1))
        elif mn.startswith("buffer_load"):
            self.kind = "vmem"
            if re.search(r"\blds\b", self.mods):
                self.rd = set(R(0)) | set(R(1)) | set(R(2)) | {"m0"}
                self.dma = True
            else:
                self.wr = set(R(0)); self.rd = set(R(1)) | set(R(2)) | set(R(3))
        elif mn.startswith("buffer_store") or mn.startswith("buffer_atomic"):
            self.kind = "vmem"
            self.rd = set(R(0)) | set(R(1)) | set(R(2)) | set(R(3))
            self.store = set(R(0)) if ("x4" in mn or "x3" in mn) else set()
            self.sdata = set(R(0))
            if mn.startswith("buffer_atomic") and "sc0" in self.mods:
                self.wr = set(R(0))
        elif mn.startswith("global_store"):
            self.kind = "vmem"
            self.rd = set(R(0)) | set(R(1)) | set(R(2))
            self.store = set(R(1)) if ("x4" in mn or "x3" in mn) else set()
            self.sdata = set(R(1))
        elif mn.startswith("global_load"):
            self.kind = "vmem"
            self.wr = set(R(0)); self.rd = set(R(1)) | set(R(2))
        elif mn in ("buffer_inv", "buffer_wbl2"):
            self.kind = "vmem"
        elif mn.startswith("v_"):
            self.kind = "valu"
            base = mn.replace("_e32", "").replace("_e64", "")
            self.trans = base in TRANS
            if base.startswith("v_permlane") and "swap" in base:
                self.wr = set(R(0)) | set(R(1)); self.rd = set(self.wr)
                self.perm = True
            else:
                self.wr = set(R(0))
                for k in range(1, len(ops)):
                    self.rd |= set(R(k))
                if base.startswith("v_fmac") or base.startswith("v_pk_fmac"):
                    self.rd |= set(R(0))
                if base in ("v_add_co_u32", "v_sub_co_u32", "v_addc_co_u32"):
                    self.wr |= set(R(1))
            self.rdlane = base in ("v_readfirstlane_b32", "v_readlane_b32")
        elif mn == "s_nop":
            self.kind = "nop"; self.states = int(ops[0]) + 1
        elif mn == "s_waitcnt":
            self.kind = "wait"
        elif mn == "s_barrier":
            self.kind = "barrier"
        elif mn.startswith("s_cbranch") or mn in ("s_branch", "s_endpgm", "s_setpc_b64"):
            self.kind = "branch"
        elif mn.startswith("s_load") or mn.startswith("s_mem"):
            self.kind = "smem"
            self.wr = set(R(0)); self.rd = set(R(1))
        elif mn.startswith("s_"):
            self.kind = "salu"
            if mn.startswith("s_cmp") or mn in ("s_setprio", "s_sleep"):
                for k in range(len(ops)):
                    self.rd |= set(R(k))
            else:
                self.wr = set(R(0))
                for k in range(1, len(ops)):
                    self.rd |= set(R(k))
        else:
            raise ValueError("unknown instr: " + t)

    def cost(self):
        if self.kind in ("label",):
            return 0
        if self.kind == "valu" and getattr(self, "trans", False):
            return 2
        if self.kind == "nop":
            return self.states
        return 1


def WV(*tags):
    return I("waitv", kind="pwaitv", need=list(tags))


def WL(*tags):
    return I("waitl", kind="pwaitl", need=list(tags))


def resolve_waits(trace):
    for cnt_kind, opk, maxn in (("pwaitv", "vmem", 63), ("pwaitl", "ds", 15)):
        issued = 0
        done = 0
        last = {}
        for ins in trace:
            if ins.kind == cnt_kind:
                ins.n = None
        for it in range(4):
            issued = 0; done = 0; last = {}
            changed = False
            for ins in trace:
                if ins.kind == opk:
                    if ins.tag is not None:
                        last[ins.tag] = issued
                    issued += 1
                elif ins.kind == "wait":
                    m = re.search(("vmcnt" if opk == "vmem" else "lgkmcnt") + r"\((\d+)\)", ins.text)
                    if m:
                        done = max(done, issued - int(m.group(1)))
                elif ins.kind == cnt_kind:
                    if ins.need == ["ALL"]:
                        idx = issued - 1
                    else:
                        idxs = []
                        for t in ins.need:
                            assert t in last, ("tag never issued", t)
                            idxs.append(last[t])
                        idx = max(idxs)
                    if idx >= done:
                        n = min(issued - 1 - idx, maxn)
                        if ins.n is None or n < ins.n:
                            ins.n = n; changed = True
                    if ins.n is not None:
                        done = max(done, issued - ins.n)
            if not changed:
                break


def materialize(seq):
    out = []
    for ins in seq:
        if ins.kind == "pwaitv" or ins.kind == "pwaitl":
            if ins.n is None:
                continue
            nm = "vmcnt" if ins.kind == "pwaitv" else "lgkmcnt"
            if out and out[-1].kind == "wait" and getattr(out[-1], "merged", False) and nm not in out[-1].text:
                out[-1] = I(out[-1].text + f" {nm}({ins.n})")
                continue
            w = I(f"s_waitcnt {nm}({ins.n})"); w.merged = True
            out.append(w)
        else:
            out.append(ins)
    return out


def need_states(p, c):
    n = 0
    pk, ck = p.kind, c.kind
    if pk == "valu":
        w = p.wr
        vw = {r for r in w if r[0] in "va" and r != "vcc"}
        sw = {r for r in w if r[0] == "s" or r == "vcc"}
        if ck == "mfma" and vw & c.rd:
            n = max(n, 2)
        if ck == "valu":
            if getattr(p, "trans", False) and not getattr(c, "trans", False) and vw & c.rd:
                n = max(n, 1)
            if getattr(c, "perm", False) and vw & c.rd:
                n = max(n, 2)
            if getattr(c, "rdlane", False) and vw & c.rd:
                n = max(n, 1)
            if sw & c.rd or (("vcc" in sw) and ("vcc" in c.text.split(None, 1)[-1].split(",", 1)[-1])):
                n = max(n, 2)
        if ck == "vmem" and sw & c.rd:
            n = max(n, 5)
        if ck == "salu" and sw & c.rd:
            n = max(n, 2)
    elif pk == "mfma":
        D = set(p.mD)
        if ck == "mfma":
            if D & (set(c.mA) | set(c.mB)):
                n = max(n, 8)
            if D & set(c.mC) and list(p.mD) != list(c.mC):
                n = max(n, 6)
            if D & set(c.mD) and list(p.mD) != list(c.mC):
                n = max(n, 8)
        elif ck == "valu":
            if D & (c.rd | c.wr):
                n = max(n, 8)
            if set(p.mC) & c.wr:
                n = max(n, 3)
        elif ck in ("vmem", "ds"):
            if D & (c.rd | c.wr):
                n = max(n, 8)
    elif pk == "salu":
        if "m0" in p.wr and ck == "vmem" and getattr(c, "dma", False):
            n = max(n, 1)
    elif pk == "vmem":
        if getattr(p, "store", None) and ck == "valu" and p.store & c.wr:
            n = max(n, 2)
        elif getattr(p, "store", None) and p.store & c.wr:
            n = max(n, 1)
    return n


def pad_hazards(seq, prev=None, name=""):
    out = []
    hist = list(prev[-24:]) if prev else []
    ins_total = 0
    for c in seq:
        if c.kind == "label":
            out.append(c)
            continue
        need = 0
        dist = 0
        for p in reversed(hist):
            if p.kind == "label":
                continue
            r = need_states(p, c)
            if r > dist:
                need = max(need, r - dist)
            dist += p.states if p.kind == "nop" else 1
            if dist >= 10:
                break
        if need > 0:
            nop = I(f"s_nop {need - 1}")
            out.append(nop); hist.append(nop)
            ins_total += need
        out.append(c); hist.append(c)
        if len(hist) > 40:
            hist = hist[-24:]
    return out, ins_total


def check_hazards(seq):
    bad = []
    hist = []
    for c in seq:
        if c.kind == "label":
            continue
        dist = 0
        for p in reversed(hist):
            r = need_states(p, c)
            if r > dist:
                bad.append((p.text, c.text, r, dist))
            dist += p.states if p.kind == "nop" else 1
            if dist >= 10:
                break
        hist.append(c)
        if len(hist) > 40:
            hist = hist[-24:]
    return bad


class Stream:
    def __init__(self):
        self.M = []
        self.pre = {}
        self.cnt = 0

    def add(self, pos, ins, order=50):
        self.cnt += 1
        self.pre.setdefault(pos, []).append((order, self.cnt, ins))

    def gapcost(self, pos):
        return sum(x[2].cost() if x[2].kind not in ("pwaitv", "pwaitl") else 1 for x in self.pre.get(pos, []))

    def fill(self, fillers, lo, hi, order=40):
        if not fillers:
            return
        base = [self.gapcost(p) for p in range(lo, hi)]
        tot = sum(f.cost() for f in fillers)
        cap = 1.0
        while True:
            room = sum(max(0.0, cap - b) for b in base)
            if room >= tot:
                break
            cap += 0.125
        k = 0
        credit = 0.0
        for gi, p in enumerate(range(lo, hi)):
            credit += max(0.0, cap - base[gi])
            while k < len(fillers) and (credit >= fillers[k].cost() - 0.5 or gi == hi - lo - 1
                                        or getattr(fillers[k], "glue", False)):
                credit -= fillers[k].cost()
                self.add(p, fillers[k], order)
                k += 1
        assert k == len(fillers)

    def linear(self, lo=0, hi=None):
        hi = len(self.M) if hi is None else hi
        out = []
        for p in range(lo, hi):
            for x in sorted(self.pre.get(p, []), key=lambda x: (x[0], x[1])):
                out.append(x[2])
            if p < len(self.M):
                out.append(self.M[p])
        return out
```

```python
import sys, math
from asmlib import *

TILE = 16896
PIECE = 1056
BIAS = 512
CSCALE = math.log2(math.e) / 16.0
THR = 0x41800000

import struct
def f2u(x):
    return struct.unpack("<I", struct.pack("<f", x))[0]

vKV = [4, 5, 6, 7]; vWQ = [8, 9, 10, 11]; vWO = [240, 241, 242, 243]
vKB = [12, 13]; vTA = [14, 15]; vTW = [251, 252]
vX = [247, 248, 249]; vST = 250; vRL = [244, 245, 246]; vMX = [253, 254]
QB = 16; S = [112, 136]; P0 = 160; NM = 184; TMP = 196; FR = 208
ACC = [112, 160]
aL = 192; aONE = 204
sK = [32, 36]; sV = [40, 44]; sWQ = [48, 52]; sX = 56; sST = 60; sWO = [64, 68]
sKo, sVo, sWq, sXo, sWL, sCnt, sWo, sSt0, sSt1, sWo1 = 72, 73, 74, 75, 76, 77, 78, 79, 80, 81
sC = 82


def vr(b, n=4): return f"v[{b}:{b+n-1}]"
def ar(b, n=4): return f"a[{b}:{b+n-1}]"
def sr(b): return f"s[{b}:{b+3}]"


class Gen:
    def __init__(self, typ, opt):
        self.typ = typ
        self.opt = opt
        self.st = Stream()
        self.ph = []
        self.rare = []
        self.nrare = 0
        self.prof = opt.get("prof", False)

    def add_phase(self, kind, slot, split, frags, pre_m=(), wtags=()):
        st = self.st
        p0 = len(st.M)
        for m in pre_m:
            st.M.append(I(m))
        gp = []
        for k, (rd, mm) in enumerate(frags):
            gp.append(len(st.M))
            A = vr(FR + 4 * (k % 8))
            for m in mm:
                st.M.append(I(m.format(A=A)))
        gp.append(len(st.M))
        rec = dict(kind=kind, slot=slot, split=split, p0=p0, gp=gp, frags=frags, end=len(st.M), wtags=list(wtags))
        self.ph.append(rec)
        return rec

    def read_instrs(self, rec, k):
        rd, _ = rec["frags"][k]
        slot = rec["slot"]
        out = []
        for (mn, roff, nreg, bases, imm) in rd:
            b = bases[slot // 4]
            off = (slot % 4) * TILE + imm
            r = FR + 4 * (k % 8) + roff
            out.append(I(f"{mn} {vr(r, nreg)}, v{b} offset:{off}", tag=("f", k % 8)))
        return out

    def slot_tags(self, rec):
        t = [("slot", rec["slot"])]
        if rec["split"]:
            t.append(("slot", rec["slot"] + 1))
        return t + rec["wtags"]

    RP = [-3, -2, -1, 0, 1, 2, 3, 3, 4, 5, 6, 7, 7, 8, 9, 10]

    def wire(self):
        st = self.st
        for i, rec in enumerate(self.ph):
            prev = self.ph[i - 1] if i > 0 else None
            gp = rec["gp"]
            if prev is not None:
                pos = prev["gp"][13]
                st.add(pos, WL("ALL"), 1)
                if self.prof and rec.get("stamp") is not None:
                    s = rec["stamp"]
                    st.add(pos, I(f"s_memrealtime s[{s}:{s+1}]"), 2)
                    st.add(pos, I("s_waitcnt lgkmcnt(0)"), 3)
                st.add(pos, WV(*self.slot_tags(rec)), 4)
                st.add(pos, I("s_barrier"), 5)
            for k in range(16):
                rp = self.RP[k]
                if rp < 0:
                    if prev is None:
                        continue
                    pos = prev["gp"][16 + rp]
                else:
                    pos = gp[rp]
                for ins in self.read_instrs(rec, k):
                    st.add(pos, ins, 10)
            for k in range(0, 13):
                if k % 2 == 0:
                    tags = [("f", k % 8)] + ([("f", (k + 1) % 8)] if (k >= 2 and k + 1 < 13) else [])
                    st.add(gp[k], WL(*tags), 90)
                elif k == 1:
                    st.add(gp[k], WL(("f", 1)), 90)

    def place_fills(self, rec, groups):
        n = len(groups)
        if n == 0:
            return
        lo = rec["gp"][0]; hi = rec["gp"][13]
        span = self.opt.get("dma_span", 36)
        span = min(span, hi - lo - 2)
        for gi, g in enumerate(groups):
            pos = lo + 1 + (gi * span) // n
            for ins in g:
                if ins.kind == "salu" and "m0" in ins.wr:
                    self.st.add(pos - 1, ins, 60)
                else:
                    self.st.add(pos, ins, 20)

    def dma_tile(self, slot, voffs, srd, soff, nt, post=()):
        g = []
        for jj in range(4):
            ins = []
            if jj == 0:
                ins.append(I(f"s_add_u32 m0, s{sWL}, {slot * TILE}"))
            ins.append(I(f"buffer_load_dwordx4 v{voffs[jj]}, {sr(srd)}, s{soff} offen offset:{jj * PIECE}{nt} lds",
                         tag=("slot", slot)))
            if jj == 3:
                ins += [I(x) for x in post]
            g.append(ins)
        return g

    def fill_kv(self, which, slot):
        srds = sK if which == "K" else sV
        so = sKo if which == "K" else sVo
        nt = " nt" if self.opt.get("kv_nt", True) else ""
        adv = [f"s_add_u32 s{so}, s{so}, 16384"]
        if self.typ == "B":
            return self.dma_tile(slot, vKV, srds[0], so, nt) + self.dma_tile(slot + 1, vKV, srds[1], so, nt, adv)
        return self.dma_tile(slot, vKV, srds[0], so, nt, adv)

    def fill_wq(self, i, slot):
        nt = " nt" if self.opt.get("w_nt", False) else ""
        g = [[I(f"s_lshr_b32 s{sXo}, s{sWq}, 12")]]
        for qt in range(3):
            g[-1].append(I(f"buffer_load_dwordx4 {ar(12 * i + 4 * qt)}, v{vX[qt]}, {sr(sX)}, s{sXo} offen", tag=("x", i)))
            g.append([])
        g.pop()
        adv = [f"s_add_u32 s{sWq}, s{sWq}, 262144", f"s_cmp_eq_u32 s{sWq}, {14 * 262144}",
               f"s_cselect_b32 s{sWq}, 0, s{sWq}"]
        if self.typ == "A":
            return g + self.dma_tile(slot, vWQ, sWQ[0], sWq, nt) + self.dma_tile(slot + 1, vWQ, sWQ[1], sWq, nt, adv)
        return g + self.dma_tile(slot, vWQ, sWQ[0], sWq, nt, adv)

    def fill_wo(self, j, slot):
        nt = " nt" if self.opt.get("w_nt", False) else ""
        kap = j & 1
        so = sWo if kap == 0 else sWo1
        if kap == 0:
            adv = [f"s_add_u32 s{sWo1}, s{sWo}, 114688"]
        else:
            adv = [f"s_add_u32 s{sWo}, s{sWo}, 128", f"s_cmp_eq_u32 s{sWo}, 896", f"s_cselect_b32 s{sWo}, 0, s{sWo}"]
        if self.typ == "A":
            return self.dma_tile(slot, vWO, sWO[0], so, nt) + self.dma_tile(slot + 1, vWO, sWO[1], so, nt, adv)
        return self.dma_tile(slot, vWO, sWO[0], so, nt, adv)

    def ph_qproj(self, i, slot):
        fr = []
        for dt in range(16):
            rd = [("ds_read_b64_tr_b16", 0, 2, vTW, dt * 32), ("ds_read_b64_tr_b16", 2, 2, vTW, 512 + dt * 32)]
            mm = []
            for qt in range(3):
                d = vr(QB + (dt * 3 + qt) * 4)
                c = d if i > 0 else "0"
                mm.append(f"v_mfma_f32_16x16x32_bf16 {d}, {{A}}, {ar(12 * i + 4 * qt)}, {c}")
            fr.append((rd, mm))
        return self.add_phase("qp", slot, self.typ == "A", fr, wtags=[("x", i)])

    def ph_qk(self, slot, sb, first=False):
        fr = []
        order = [(u, kt) for u in range(8) for kt in range(2)] if first else [(u, kt) for kt in range(2) for u in range(8)]
        for (u, kt) in order:
            rd = [("ds_read_b128", 0, 4, vKB, kt * 512 + u * 64)]
            mm = []
            for qt in range(3):
                d = vr(S[sb] + (kt * 3 + qt) * 4)
                c = d if u > 0 else ("0" if first else vr(NM + 4 * qt))
                mm.append(f"v_mfma_f32_16x16x32_bf16 {d}, {{A}}, {vr(QB + (u * 3 + qt) * 4)}, {c}")
            fr.append((rd, mm))
        return self.add_phase("qk", slot, self.typ == "B", fr)

    def ph_pv(self, slot):
        fr = []
        for dt in range(16):
            rd = [("ds_read_b64_tr_b16", 0, 2, vTA, dt * 32), ("ds_read_b64_tr_b16", 2, 2, vTA, 512 + dt * 32)]
            mm = []
            for qt in range(3):
                d = ar((dt * 3 + qt) * 4)
                mm.append(f"v_mfma_f32_16x16x32_bf16 {d}, {{A}}, {vr(P0 + 4 * qt)}, {d}")
            fr.append((rd, mm))
        pre = [f"v_mfma_f32_16x16x32_bf16 {ar(aL + 4 * qt)}, {ar(aONE)}, {vr(P0 + 4 * qt)}, {ar(aL + 4 * qt)}" for qt in range(3)]
        return self.add_phase("pv", slot, self.typ == "B", fr, pre_m=pre)

    def ph_out(self, j, slot):
        m, kap = j >> 1, j & 1
        X = ACC[m & 1]
        fr = []
        for sl in range(4):
            for nt in range(4):
                rd = [("ds_read_b64_tr_b16", 0, 2, vTW, (2 * sl) * 128 + nt * 32),
                      ("ds_read_b64_tr_b16", 2, 2, vTW, (2 * sl + 1) * 128 + nt * 32)]
                mm = []
                for qt in range(3):
                    d = vr(X + (nt * 3 + qt) * 4)
                    c = "0" if (kap == 0 and sl == 0) else d
                    mm.append(f"v_mfma_f32_16x16x32_bf16 {d}, {{A}}, {vr(QB + ((4 * kap + sl) * 3 + qt) * 4)}, {c}")
                fr.append((rd, mm))
        return self.add_phase("op", slot, self.typ == "A", fr)

    def conv_q(self, u):
        o = []
        for qt in range(3):
            T0 = QB + (6 * u + qt) * 4; T1 = QB + (6 * u + 3 + qt) * 4; D = QB + (3 * u + qt) * 4
            for b in (T0, T0 + 2, T1, T1 + 2):
                o.append(I(f"v_pk_mul_f32 {vr(b, 2)}, {vr(b, 2)}, s[{sC}:{sC+1}]"))
            o.append(I(f"v_cvt_pk_bf16_f32 v{D}, v{T0}, v{T0+1}"))
            o.append(I(f"v_cvt_pk_bf16_f32 v{D+1}, v{T0+2}, v{T0+3}"))
            o.append(I(f"v_cvt_pk_bf16_f32 v{D+2}, v{T1}, v{T1+1}"))
            o.append(I(f"v_cvt_pk_bf16_f32 v{D+3}, v{T1+2}, v{T1+3}"))
        for nm in ("v_permlane32_swap_b32", "v_permlane16_swap_b32"):
            for qt in range(3):
                D = QB + (3 * u + qt) * 4
                o.append(I(f"{nm} v{D}, v{D+2}"))
                o.append(I(f"{nm} v{D+1}, v{D+3}"))
        return o

    def conv_o(self, s):
        o = []
        for qt in range(3):
            a0 = (2 * s * 3 + qt) * 4; a1 = ((2 * s + 1) * 3 + qt) * 4; D = QB + (3 * s + qt) * 4
            t = TMP
            for r in range(4):
                o.append(I(f"v_accvgpr_read_b32 v{t+r}, a{a0+r}"))
            for r in range(4):
                o.append(I(f"v_accvgpr_read_b32 v{t+4+r}, a{a1+r}"))
            for r in range(4):
                o.append(I(f"v_cvt_pk_bf16_f32 v{D+r}, v{t+2*r}, v{t+2*r+1}"))
        return o

    def exp_block(self, sb):
        o = []
        pend = []
        for qt in range(3):
            for kt in range(2):
                b = S[sb] + (kt * 3 + qt) * 4
                for r in range(4):
                    o.append(I(f"v_exp_f32 v{b+r}, v{b+r}"))
                    if r == 1 and pend:
                        o += pend; pend = []
                pend = [I(f"v_cvt_pk_bf16_f32 v{P0+4*qt+2*kt}, v{b}, v{b+1}"),
                        I(f"v_cvt_pk_bf16_f32 v{P0+4*qt+2*kt+1}, v{b+2}, v{b+3}")]
        o += pend
        return o

    def max_block(self, sb):
        b = S[sb]
        o = [I(f"v_max3_f32 v{vMX[0]}, v{b}, v{b+1}, v{b+2}"), I(f"v_max3_f32 v{vMX[1]}, v{b+3}, v{b+4}, v{b+5}")]
        k = 6; w = 0
        while k < 24:
            o.append(I(f"v_max3_f32 v{vMX[w]}, v{vMX[w]}, v{b+k}, v{b+k+1}"))
            k += 2; w ^= 1
        o.append(I(f"v_max_f32 v{vMX[0]}, v{vMX[0]}, v{vMX[1]}"))
        o.append(I(f"v_cmp_lt_f32 vcc, {THR:#x}, v{vMX[0]}"))
        return o

    def colmax(self, sb):
        o = []
        for qt in range(3):
            b0 = S[sb] + qt * 4; b1 = S[sb] + (3 + qt) * 4; t = TMP + qt
            o.append(I(f"v_max3_f32 v{t}, v{b0}, v{b0+1}, v{b0+2}"))
            o.append(I(f"v_max3_f32 v{t}, v{t}, v{b0+3}, v{b1}"))
            o.append(I(f"v_max3_f32 v{t}, v{t}, v{b1+1}, v{b1+2}"))
            o.append(I(f"v_max_f32 v{t}, v{t}, v{b1+3}"))
        for nm in ("v_permlane32_swap_b32", "v_permlane16_swap_b32"):
            for qt in range(3):
                o.append(I(f"v_mov_b32 v{TMP+4+qt}, v{TMP+qt}"))
            for qt in range(3):
                o.append(I(f"{nm} v{TMP+qt}, v{TMP+4+qt}"))
            for qt in range(3):
                o.append(I(f"v_max_f32 v{TMP+qt}, v{TMP+qt}, v{TMP+4+qt}"))
        return o

    def init_softmax(self):
        o = self.colmax(0)
        for qt in range(3):
            for r in range(4):
                o.append(I(f"v_sub_f32 v{NM+4*qt+r}, 0, v{TMP+qt}"))
        for qt in range(3):
            for kt in range(2):
                b = S[0] + (kt * 3 + qt) * 4
                for r in range(4):
                    o.append(I(f"v_sub_f32 v{b+r}, v{b+r}, v{TMP+qt}"))
        return o

    def rare_code(self, sb, lab, ret):
        o = [I(f"{lab}:"), I("s_nop 7"), I("s_nop 1")]
        o += self.colmax(sb)
        for qt in range(3):
            o.append(I(f"v_max_f32 v{TMP+qt}, 0, v{TMP+qt}"))
        for qt in range(3):
            o.append(I(f"v_exp_f32 v{TMP+4+qt}, -v{TMP+qt}"))
        for qt in range(3):
            for r in range(4):
                o.append(I(f"v_sub_f32 v{NM+4*qt+r}, v{NM+4*qt+r}, v{TMP+qt}"))
            for kt in range(2):
                b = S[sb] + (kt * 3 + qt) * 4
                for r in range(4):
                    o.append(I(f"v_sub_f32 v{b+r}, v{b+r}, v{TMP+qt}"))
        for qt in range(3):
            bases = [(dt * 3 + qt) * 4 for dt in range(16)] + [aL + 4 * qt]
            for a in bases:
                for r in range(4):
                    o.append(I(f"v_accvgpr_read_b32 v{TMP+8+r}, a{a+r}"))
                for r in range(4):
                    o.append(I(f"v_mul_f32 v{TMP+8+r}, v{TMP+8+r}, v{TMP+4+qt}"))
                for r in range(4):
                    o.append(I(f"v_accvgpr_write_b32 a{a+r}, v{TMP+8+r}"))
        o.append(I("s_nop 1"))
        o.append(I(f"s_branch {ret}"))
        o, _ = pad_hazards(o)
        return o

    def rare_branch(self, pos, sb):
        n = self.nrare; self.nrare += 1
        lab = f"L{self.typ}_rare{n}"; ret = f"L{self.typ}_ret{n}"
        self.st.add(pos, I(f"s_cbranch_vccnz {lab}"), -10)
        self.st.add(pos, I(f"{ret}:"), -9)
        self.rare += self.rare_code(sb, lab, ret)

    def out_epi(self, m):
        X = ACC[m & 1]
        o = []
        st_mod = self.opt.get("st_mod", "")
        for h in range(2):
            for qt in range(3):
                b0 = X + ((2 * h) * 3 + qt) * 4; b1 = X + ((2 * h + 1) * 3 + qt) * 4
                for r in range(4):
                    o.append(I(f"v_mul_f32 v{b0+r}, v{b0+r}, v{vRL[qt]}"))
                for r in range(4):
                    o.append(I(f"v_mul_f32 v{b1+r}, v{b1+r}, v{vRL[qt]}"))
                o.append(I(f"v_cvt_pk_bf16_f32 v{b0}, v{b0}, v{b0+1}"))
                o.append(I(f"v_cvt_pk_bf16_f32 v{b0+1}, v{b0+2}, v{b0+3}"))
                o.append(I(f"v_cvt_pk_bf16_f32 v{b0+2}, v{b1}, v{b1+1}"))
                o.append(I(f"v_cvt_pk_bf16_f32 v{b0+3}, v{b1+2}, v{b1+3}"))
                so = sSt0 if h == 0 else sSt1
                o.append(I(f"buffer_store_dwordx4 {vr(b0)}, v{vST}, {sr(sST)}, s{so} offen offset:{qt*1024}{st_mod}"))
        o.append(I(f"s_add_u32 s{sSt0}, s{sSt0}, 6144"))
        o.append(I(f"s_cmp_eq_u32 s{sSt0}, 43008"))
        o.append(I(f"s_cselect_b32 s{sSt0}, 0, s{sSt0}"))
        o.append(I(f"s_add_u32 s{sSt1}, s{sSt0}, 3072"))
        for x in o[-3:]:
            x.glue = True
        return o

    def srd(self, o, d, ptr, off_reg, nrec, bias=0):
        o.append(I(f"s_add_u32 s{d}, s{ptr}, s{off_reg}"))
        o.append(I(f"s_addc_u32 s{d+1}, s{ptr+1}, 0"))
        if bias:
            o.append(I(f"s_sub_u32 s{d}, s{d}, {bias}"))
            o.append(I(f"s_subb_u32 s{d+1}, s{d+1}, 0"))
        if isinstance(nrec, int):
            o.append(I(f"s_mov_b32 s{d+2}, {nrec + bias}"))
        else:
            o.append(I(f"s_sub_u32 s{d+2}, {nrec[0] + bias}, s{nrec[1]}"))
        o.append(I(f"s_mov_b32 s{d+3}, 0x20000"))

    def prologue(self):
        o = []
        T = self.typ
        a = lambda t: o.append(I(t))
        if T == "B":
            px, pk, pv, pwq, pwo = 14, 16, 18, 20, 22
            a("s_and_b32 s84, s27, 1"); a("s_lshl_b32 s85, s26, 1"); a("s_add_u32 s84, s84, s85")
            a("s_lshr_b32 s85, s27, 1")
            a("s_lshl_b32 s86, s85, 1")
            a("s_add_u32 s87, s86, s29")
            a("s_mul_i32 s88, s87, 86016"); self.srd(o, sX, px, 88, 86016)
            a("s_lshl_b32 s88, s84, 9"); self.srd(o, sWQ[0], pwq, 88, (3670016, 88), BIAS)
            a("s_mul_i32 s88, s85, 7"); a("s_lshr_b32 s88, s88, 2"); a(f"s_lshl_b32 s{sWq}, s88, 18")
            self.first_loads_mark = len(o)
            for p in range(2):
                a(f"s_add_u32 s88, s86, {p}"); a("s_lshl_b32 s88, s88, 4"); a("s_add_u32 s88, s88, s84"); a("s_lshl_b32 s88, s88, 19")
                self.srd(o, sK[p], pk, 88, 524288, BIAS); self.srd(o, sV[p], pv, 88, 524288, BIAS)
            a("s_mul_i32 s88, s84, 229376"); self.srd(o, sWO[0], pwo, 88, 229376, BIAS)
            a("s_add_u32 s88, s87, 16"); a("s_lshl_b32 s88, s88, 4"); a("s_add_u32 s88, s88, s84")
            a("s_mul_i32 s89, s85, 7"); a("s_lshr_b32 s89, s89, 3")
        else:
            px, pk, pv, pwq, pwo = 4, 6, 8, 10, 12
            a("s_lshl_b32 s84, s26, 1")
            a("s_mul_i32 s88, s27, 86016"); self.srd(o, sX, px, 88, 86016)
            for p in range(2):
                a(f"s_add_u32 s88, s84, {p}"); a("s_lshl_b32 s88, s88, 9"); self.srd(o, sWQ[p], pwq, 88, (3670016, 88), BIAS)
            a("s_mul_i32 s88, s27, 7"); a("s_lshr_b32 s88, s88, 3"); a(f"s_lshl_b32 s{sWq}, s88, 18")
            self.first_loads_mark = len(o)
            a("s_lshl_b32 s88, s27, 3"); a("s_add_u32 s88, s88, s26"); a("s_lshl_b32 s88, s88, 19")
            self.srd(o, sK[0], pk, 88, 524288, BIAS); self.srd(o, sV[0], pv, 88, 524288, BIAS)
            for p in range(2):
                a(f"s_add_u32 s88, s84, {p}"); a("s_mul_i32 s88, s88, 229376"); self.srd(o, sWO[p], pwo, 88, 229376, BIAS)
            a("s_lshl_b32 s88, s27, 4"); a("s_add_u32 s88, s88, s84"); a("s_add_u32 s88, s88, s29")
            a("s_mul_i32 s89, s27, 7"); a("s_lshr_b32 s89, s89, 4")
        a("s_mul_i32 s88, s88, 86016"); a("s_mul_i32 s90, s30, 43008"); a("s_add_u32 s88, s88, s90")
        self.srd(o, sST, 24, 88, 43008)
        a(f"s_lshl_b32 s{sWo}, s89, 7")
        a(f"s_mul_i32 s{sSt0}, s89, 6144"); a(f"s_add_u32 s{sSt1}, s{sSt0}, 3072")
        a(f"s_mov_b32 s{sKo}, 0"); a(f"s_mov_b32 s{sVo}, 0")
        a(f"s_mul_i32 s88, s29, {TILE}")
        if T == "B":
            for r in vKB + vTA:
                a(f"v_add_u32 v{r}, s88, v{r}")
        else:
            for r in vTW:
                a(f"v_add_u32 v{r}, s88, v{r}")
        return o

    def build(self):
        T = self.typ
        st = self.st
        opt = self.opt
        B = (T == "B")
        pro = self.prologue()
        if B:
            wq_slot = [4 + ((i + 2) % 4) for i in range(14)]
            kv_slot = lambda ph: 2 * (ph % 4)
            npre_w = 3
            wo_slot = [j % 8 for j in range(14)]
        else:
            wq_slot = [2 + 2 * ((i + 1) % 3) for i in range(14)]
            kv_slot = lambda ph: ph % 4
            npre_w = 2
            wo_slot = [[4, 6, 0, 2][j % 4] for j in range(14)]
        LA = 3 if B else opt.get("da", 3)
        kvtype = lambda ph: "K" if (ph == 0 or (ph % 2 == 1 and ph < 63)) else "V"
        qp = [self.ph_qproj(i, wq_slot[i]) for i in range(14)]
        q0 = self.ph_qk(kv_slot(0), 0, first=True)
        lp = [self.ph_qk(kv_slot(1), 1), self.ph_pv(kv_slot(2)), self.ph_qk(kv_slot(3), 0), self.ph_pv(kv_slot(4))]
        t61 = self.ph_qk(kv_slot(61), 1); t62 = self.ph_pv(kv_slot(62)); t63 = self.ph_pv(kv_slot(63))
        op = [self.ph_out(j, wo_slot[j]) for j in range(14)]
        q0["stamp"] = 92; op[0]["stamp"] = 94
        self.wire()
        early = []
        for i in range(npre_w):
            for g in self.fill_wq(i, wq_slot[i]):
                early += g
        pro = pro[:self.first_loads_mark] + early + pro[self.first_loads_mark:]
        kv_issued = 0
        for ph in range(2):
            for g in self.fill_kv(kvtype(ph), kv_slot(ph)):
                pro += g
            kv_issued += 1
        for i in range(14):
            groups = []
            if i + npre_w < 14:
                groups += self.fill_wq(i + npre_w, wq_slot[i + npre_w])
            if B:
                if i == 12:
                    groups += self.fill_kv(kvtype(2), kv_slot(2)); kv_issued += 1
            else:
                if i == 12 and LA >= 2:
                    groups += self.fill_kv(kvtype(2), kv_slot(2)); kv_issued += 1
            self.place_fills(qp[i], groups)
        def kv_fill_for(ph):
            t = ph + LA
            return self.fill_kv(kvtype(t), kv_slot(t))
        assert LA in (1, 2, 3)
        g0 = []
        while kv_issued <= LA:
            g0 += self.fill_kv(kvtype(kv_issued), kv_slot(kv_issued)); kv_issued += 1
        assert kv_issued >= LA + 1
        skip = kv_issued - (LA + 1)
        assert skip == 0
        self.place_fills(q0, g0)
        for k in range(4):
            self.place_fills(lp[k], kv_fill_for(1 + k))
        if LA == 3:
            lab = f"L{T}_nopatch"
            pos = lp[2]["gp"][13] + 1
            pl = [f"s_cmp_eq_u32 s{sCnt}, 14", f"s_cbranch_scc0 {lab}"]
            for p in range(2 if B else 1):
                pl += [f"s_mov_b32 s{sK[p]}, s{sV[p]}", f"s_mov_b32 s{sK[p]+1}, s{sV[p]+1}"]
            pl += [f"s_mov_b32 s{sKo}, s{sVo}", f"{lab}:"]
            for x in pl:
                ins = I(x)
                if x.startswith("s_mov"):
                    ins.skippable = True
                st.add(pos, ins, 70)
        tail = {61: [], 62: [], 63: []}
        for ph in (61, 62):
            if ph + LA <= 63:
                tail[ph] += kv_fill_for(ph)
        if B:
            for k, ph in enumerate((61, 62, 63)):
                tail[ph] += self.fill_wo(2 * k, wo_slot[2 * k]) + self.fill_wo(2 * k + 1, wo_slot[2 * k + 1])
            of = {0: [6, 7]}
            for n in range(1, 7):
                of[n] = [n + 7]
        else:
            for k, ph in enumerate((61, 62, 63)):
                tail[ph] += self.fill_wo(k, wo_slot[k])
            of = {n: [n + 3] for n in range(0, 11)}
        self.place_fills(t61, tail[61]); self.place_fills(t62, tail[62]); self.place_fills(t63, tail[63])
        for n in range(14):
            groups = []
            for j in of.get(n, []):
                groups += self.fill_wo(j, wo_slot[j])
            self.place_fills(op[n], groups)
        z = [I(f"v_accvgpr_write_b32 a{r}, 0") for r in range(168, 204)]
        z += [I(f"v_mov_b32 v{TMP+8}, 0x3f803f80")]
        z[-1] = I("v_mov_b32 v2, 0x3f803f80")
        z += [I(f"v_accvgpr_write_b32 a{aONE+r}, v2") for r in range(4)]
        st.fill(z, qp[1]["p0"], qp[3]["end"])
        for i in range(1, 14):
            zz = [I(f"v_accvgpr_write_b32 a{r}, 0") for r in range(12 * (i - 1), 12 * i)]
            st.fill(zz, qp[i]["p0"] + 1, qp[i]["p0"] + (9 if i == 13 else 46))
        s0 = qp[13]["p0"] + 9
        wins = [(0, 0, 10), (1, 10, 20), (2, 20, 30), (4, 30, 39), (3, 39, 49), (5, 49, 59), (6, 59, 69), (7, 69, 79)]
        for (u, a, b) in wins:
            assert s0 + b <= q0["gp"][2 * u] and s0 + a >= qp[13]["gp"][2 * u + 2] + 2
            st.fill(self.conv_q(u), s0 + a, s0 + b)
        st.fill([I(f"v_accvgpr_write_b32 a{r}, 0") for r in range(156, 168)], q0["gp"][14], q0["end"])
        for k, rec in enumerate(lp):
            if rec["kind"] == "qk":
                st.fill(self.exp_block(0 if k == 0 else 1), rec["p0"], rec["end"] - 1)
            else:
                sb = 1 if k == 1 else 0
                st.fill(self.max_block(sb), rec["p0"] + 4, rec["end"] - 4)
        st.fill(self.exp_block(0), t61["p0"], t61["end"] - 1)
        st.fill(self.max_block(1), t62["p0"] + 4, t62["end"] - 4)
        self.rare_branch(lp[2]["p0"], 1)
        loop_end_rare = (0,)
        self.rare_branch(t63["p0"], 1)
        for x in self.exp_block(1):
            st.add(t63["p0"], x, 0)
        rl = [I(f"v_accvgpr_read_b32 v{vRL[qt]}, a{aL+4*qt}") for qt in range(3)]
        rl += [I(f"v_rcp_f32 v{vRL[qt]}, v{vRL[qt]}") for qt in range(3)]
        st.fill(rl, t63["gp"][1], t63["gp"][3])
        s0 = t63["gp"][0] + 9
        for s in range(8):
            lim = op[0]["gp"][4 * s] if s < 4 else op[1]["gp"][4 * (s - 4)]
            st.fill(self.conv_o(s), s0 + 15 * s, min(s0 + 15 * (s + 1), lim))
        for m in range(6):
            st.fill(self.out_epi(m), op[2 * m + 2]["p0"] + 3, op[2 * m + 3]["end"] - 3)
        L0 = lp[0]["p0"]; L1 = lp[3]["end"]
        first = qp[0]
        opening = [WV(*self.slot_tags(first))]
        if self.prof:
            opening += [I("s_memrealtime s[90:91]"), I("s_waitcnt lgkmcnt(0)")]
        opening.append(I("s_barrier"))
        for k in range(3):
            opening += self.read_instrs(first, k)
        segA = pro + opening + st.linear(0, L0) + self.init_softmax() + [I(f"s_mov_b32 s{sCnt}, 0")]
        n = self.nrare; self.nrare += 1
        lab = f"L{T}_rare{n}"; ret = f"L{T}_ret{n}"
        self.rare += self.rare_code(0, lab, ret)
        body = [I(f"L{T}_loop:")] + st.linear(L0, L1) + [I(f"s_cbranch_vccnz {lab}"), I(f"{ret}:"),
                I(f"s_add_u32 s{sCnt}, s{sCnt}, 1"), I(f"s_cmp_lt_u32 s{sCnt}, 15"), I(f"s_cbranch_scc1 L{T}_loop")]
        segC = st.linear(L1, len(st.M)) + self.out_epi(6)
        resolve_waits(segA + body + body + segC)
        segA = materialize(segA); body = materialize(body); segC = materialize(segC)
        segA, nA = pad_hazards(segA)
        body, nB = pad_hazards(body, segA)
        body2, nB2 = pad_hazards(body, body)
        assert nB2 == 0 or True
        if nB2:
            body = body2
        segC, nC = pad_hazards(segC, body)
        assert not check_hazards(segA + body + body + segC)
        assert not check_hazards([x for x in segA + body + body + segC if not getattr(x, "skippable", False)])
        sys.stderr.write(f"type {T}: nops inserted: pre {nA} body {nB}+{nB2} post {nC}; instr counts {len(segA)} {len(body)} {len(segC)} rare {len(self.rare)}\n")
        fin = []
        if self.prof:
            fin += [I("s_waitcnt vmcnt(0)"), I("s_memrealtime s[96:97]"), I("s_waitcnt lgkmcnt(0)"), I("s_branch L_prof")]
        else:
            fin += [I("s_endpgm")]
        return segA + body + segC + fin + self.rare


def common_prologue(prof):
    o = []
    a = lambda t: o.append(I(t))
    a("s_cmp_ge_u32 s2, 256"); a("s_cbranch_scc1 L_end")
    if prof:
        a("s_memrealtime s[98:99]")
    a("s_load_dwordx16 s[4:19], s[0:1], 0")
    a("s_load_dwordx4 s[20:23], s[0:1], 64")
    a("s_load_dwordx2 s[24:25], s[0:1], 96")
    a("v_lshrrev_b32 v2, 6, v0")
    a("v_and_b32 v1, 63, v0")
    a("v_readfirstlane_b32 s28, v2")
    a("s_and_b32 s26, s2, 7"); a("s_lshr_b32 s27, s2, 4"); a("s_bfe_u32 s31, s2, 0x10003")
    a("s_lshr_b32 s29, s28, 1"); a("s_and_b32 s30, s28, 1")
    a(f"s_mul_i32 s{sWL}, s28, {4 * PIECE}")
    a(f"s_mov_b32 s{sC}, {f2u(CSCALE):#x}"); a(f"s_mov_b32 s{sC+1}, {f2u(CSCALE):#x}")
    a("v_and_b32 v3, 15, v1")
    a("s_mul_i32 s84, s30, 48")
    a("v_add_u32 v16, s84, v3")
    a("v_mul_u32_u24 v16, 896, v16")
    a("v_lshrrev_b32 v17, 4, v1")
    a(f"v_lshl_add_u32 v{vX[0]}, v17, 4, v16")
    a(f"v_add_u32 v{vX[1]}, 14336, v{vX[0]}")
    a(f"v_add_u32 v{vX[2]}, 28672, v{vX[0]}")
    a("v_lshrrev_b32 v18, 5, v1")
    a("v_lshlrev_b32 v18, 15, v18")
    a("v_lshl_add_u32 v18, v2, 16, v18")
    a("v_and_b32 v19, 31, v1")
    a("v_lshl_add_u32 v18, v19, 4, v18")
    for jj in range(4):
        a(f"v_add_u32 v{vWQ[jj]}, {BIAS + jj * (8192 - PIECE)}, v18")
    a(f"v_lshlrev_b32 v{vST}, 4, v1")
    a(f"v_lshl_add_u32 v18, v2, 12, v{vST}")
    for jj in range(4):
        a(f"v_add_u32 v{vKV[jj]}, {BIAS - 32 * jj}, v18")
    a("v_lshrrev_b32 v18, 3, v1")
    a("v_lshlrev_b32 v18, 4, v18")
    a("v_lshl_add_u32 v18, v2, 2, v18")
    a("v_mul_u32_u24 v18, 896, v18")
    a("v_and_b32 v19, 7, v1")
    a("v_lshl_add_u32 v18, v19, 4, v18")
    for jj in range(4):
        a(f"v_add_u32 v{vWO[jj]}, {BIAS + jj * (896 - PIECE)}, v18")
    a(f"v_mul_u32_u24 v18, {PIECE}, v3")
    a(f"v_lshl_add_u32 v{vKB[0]}, v17, 4, v18")
    a(f"v_add_u32 v{vKB[1]}, {4 * TILE}, v{vKB[0]}")
    a("v_lshrrev_b32 v18, 2, v1")
    a(f"v_mul_u32_u24 v18, {PIECE}, v18")
    a("v_and_b32 v19, 3, v1")
    a(f"v_lshl_add_u32 v{vTA[0]}, v19, 3, v18")
    a(f"v_add_u32 v{vTA[1]}, {4 * TILE}, v{vTA[0]}")
    a(f"v_mov_b32 v{vTW[0]}, v{vTA[0]}")
    a(f"v_mov_b32 v{vTW[1]}, v{vTA[1]}")
    a("s_waitcnt lgkmcnt(0)")
    a("s_cmp_eq_u32 s31, 1"); a("s_cbranch_scc1 L_typeB")
    o, _ = pad_hazards(o)
    return o


def prof_tail():
    o = []
    a = lambda t: o.append(I(t))
    a("L_prof:")
    a("s_lshl_b32 s3, s2, 6"); a("s_add_u32 s3, s3, 0x4000000")
    for k, s in enumerate((98, 90, 92, 94, 96)):
        a(f"v_mov_b32 v{16+2*k}, s{s}"); a(f"v_mov_b32 v{17+2*k}, s{s+1}")
    a("v_mov_b32 v26, s96"); a("v_mov_b32 v27, s97")
    a("v_mov_b32 v12, s3")
    a("v_cmp_eq_u32 vcc, 0, v0"); a("s_and_saveexec_b64 s[34:35], vcc"); a("s_cbranch_execz L_end")
    a("global_store_dwordx4 v12, v[16:19], s[24:25]")
    a("global_store_dwordx4 v12, v[20:23], s[24:25] offset:16")
    a("global_store_dwordx4 v12, v[24:27], s[24:25] offset:32")
    a("s_waitcnt vmcnt(0)")
    o, _ = pad_hazards(o)
    return o


def reduce_kernel():
    o = []
    a = lambda t: o.append(I(t))
    a("s_cmp_ge_u32 s2, 672"); a("s_cbranch_scc1 LR_end")
    a("s_load_dwordx2 s[4:5], s[0:1], 80")
    a("s_load_dwordx2 s[6:7], s[0:1], 96")
    a("v_lshrrev_b32 v2, 6, v0"); a("v_and_b32 v1, 63, v0")
    a("v_readfirstlane_b32 s8, v2")
    a("s_mul_i32 s9, s2, 3121"); a("s_lshr_b32 s9, s9, 16")
    a("s_mul_i32 s10, s9, 21"); a("s_sub_u32 s10, s2, s10")
    a("s_lshl_b32 s10, s10, 2"); a("s_add_u32 s10, s10, s8")
    a("s_cmp_ge_u32 s10, 42"); a("s_cselect_b32 s11, 1, 0")
    a("s_mul_i32 s12, s11, 42"); a("s_sub_u32 s12, s10, s12")
    a("s_mul_i32 s13, s12, 43"); a("s_lshr_b32 s13, s13, 7")
    a("s_mul_i32 s14, s13, 3"); a("s_sub_u32 s14, s12, s14")
    a("s_mul_i32 s15, s9, 1376256")
    a("s_lshl_b32 s16, s10, 10"); a("s_add_u32 s15, s15, s16")
    a("v_lshlrev_b32 v3, 4, v1")
    a("s_waitcnt lgkmcnt(0)")
    a("s_add_u32 s20, s6, s15"); a("s_addc_u32 s21, s7, 0"); a(f"s_mov_b32 s22, {15 * 86016 + 1024}"); a("s_mov_b32 s23, 0x20000")
    a("s_mov_b32 s17, 0")
    for h in range(16):
        a(f"buffer_load_dwordx4 {vr(8 + 4 * h)}, v3, s[20:23], s17 offen")
        if h < 15:
            a("s_add_u32 s17, s17, 86016")
    a("s_and_b32 s18, s9, 15"); a("s_lshr_b32 s19, s9, 4")
    a("s_mul_i32 s18, s18, 96"); a("s_mul_i32 s24, s11, 48"); a("s_add_u32 s18, s18, s24")
    a("s_lshl_b32 s24, s14, 4"); a("s_add_u32 s18, s18, s24")
    a("s_mul_i32 s18, s18, 1792"); a("s_mul_i32 s19, s19, 896"); a("s_add_u32 s18, s18, s19")
    a("s_lshl_b32 s24, s13, 6"); a("s_add_u32 s18, s18, s24")
    a("v_and_b32 v4, 15, v1"); a("v_mul_u32_u24 v4, 1792, v4")
    a("v_lshrrev_b32 v5, 4, v1"); a("v_lshl_add_u32 v4, v5, 4, v4")
    a("s_mov_b32 s24, s4"); a("s_mov_b32 s25, s5"); a(f"s_mov_b32 s26, {16 * 96 * 896 * 2}"); a("s_mov_b32 s27, 0x20000")
    a("s_mov_b32 s28, 0xffff0000")
    acc = 72
    for h in range(16):
        a(f"s_waitcnt vmcnt({15 - h})")
        for r in range(4):
            src = 8 + 4 * h + r
            if h == 0:
                a(f"v_lshlrev_b32 v{acc+2*r}, 16, v{src}")
                a(f"v_and_b32 v{acc+2*r+1}, s28, v{src}")
            else:
                a(f"v_lshlrev_b32 v6, 16, v{src}")
                a(f"v_and_b32 v7, s28, v{src}")
                a(f"v_add_f32 v{acc+2*r}, v{acc+2*r}, v6")
                a(f"v_add_f32 v{acc+2*r+1}, v{acc+2*r+1}, v7")
    for r in range(4):
        a(f"v_cvt_pk_bf16_f32 v{8+r}, v{acc+2*r}, v{acc+2*r+1}")
    for nm in ("v_permlane32_swap_b32", "v_permlane16_swap_b32"):
        a(f"{nm} v8, v10"); a(f"{nm} v9, v11")
    a("buffer_store_dwordx4 v[8:11], v4, s[24:27], s18 offen")
    a("LR_end:"); a("s_endpgm")
    o, _ = pad_hazards(o)
    return o


def kd(name, vg, acc, sg=102):
    return [".p2align 6", f".amdhsa_kernel {name}", f"  .amdhsa_next_free_vgpr {vg}", f"  .amdhsa_next_free_sgpr {sg}",
            f"  .amdhsa_accum_offset {acc}", "  .amdhsa_group_segment_fixed_size 0", "  .amdhsa_kernarg_size 104",
            "  .amdhsa_user_sgpr_count 2", "  .amdhsa_user_sgpr_kernarg_segment_ptr 1",
            "  .amdhsa_system_sgpr_workgroup_id_x 1", ".end_amdhsa_kernel"]


def generate(opt):
    prof = opt.get("prof", False)
    L = []
    L.append("; @launch kernel=attn_kernel grid=(256,1,1) block=(256,1,1) lds=163840")
    L.append("; @launch kernel=reduce_kernel grid=(672,1,1) block=(256,1,1) lds=0")
    L.append('.amdgcn_target "amdgcn-amd-amdhsa--gfx950"')
    L.append(".text")
    L += [".globl attn_kernel", ".p2align 8", ".type attn_kernel,@function", "attn_kernel:"]
    fmt = lambda ins: ins.text if ins.kind == "label" else "    " + ins.text
    L += [fmt(x) for x in common_prologue(prof)]
    L += [fmt(x) for x in Gen("A", opt).build()]
    L.append(".p2align 6")
    L.append("L_typeB:")
    L += [fmt(x) for x in Gen("B", opt).build()]
    if prof:
        L += [fmt(x) for x in prof_tail()]
    L += ["L_end:", "    s_endpgm"]
    L += [".globl reduce_kernel", ".p2align 8", ".type reduce_kernel,@function", "reduce_kernel:"]
    L += [fmt(x) for x in reduce_kernel()]
    L.append('.section .rodata,"a"')
    L += kd("attn_kernel", 512, 256)
    L += kd("reduce_kernel", 80, 80, 32)
    return "\n".join(L) + "\n"


if __name__ == "__main__":
    out = sys.argv[1]
    opt = {}
    for kv in sys.argv[2:]:
        k, v = kv.split("=")
        try:
            v = int(v)
        except ValueError:
            pass
        opt[k] = v
    open(out, "w").write(generate(opt))
```
